```python
import torch

def _softmax(x, axis=-1):
    return torch.softmax(x, dim=axis)
def _gelu(x):
    return torch.nn.functional.gelu(x, approximate="tanh")
def _silu(x):
    return torch.nn.functional.silu(x)
def _sigmoid(x):
    return torch.sigmoid(x)
def _layernorm(x, axis=-1, eps=1e-5):
    m = x.mean(dim=axis, keepdim=True)
    v = x.var(dim=axis, keepdim=True, unbiased=False)
    return (x - m) / torch.sqrt(v + eps)
def _scatter_add(tgt, idx, src, axis=0):
    return tgt.clone().index_add_(axis, idx, src)
def _segment_sum(src, seg, n):
    out = torch.zeros((n,) + src.shape[1:], dtype=src.dtype)
    return out.index_add_(0, seg, src)
def _pad(x, pw):
    flat = tuple(v for pair in reversed(pw) for v in pair)
    return torch.nn.functional.pad(x, flat)

kernel_name = 'recurrent_scan__mha_block_cached__swiglu_ffn__decode'

def setup_inputs():

    _w = (lambda a: (lambda t: t.to(torch.bfloat16) if t.is_floating_point() else t)(torch.as_tensor(a)))
    def _A_setup():
        B, Sq, D = 2, 1, 576
        H, Sk, Dh = 32, 8192, 128
        return {
            "x": _w((lambda *s: torch.randn(*s, dtype=torch.bfloat16) * 0.05)(B, Sq, D)),
            "k_cache": _w((lambda *s: torch.randn(*s, dtype=torch.bfloat16) * 1.6)(B, H, Sk, Dh)),
            "v_cache": _w((lambda *s: torch.randn(*s, dtype=torch.bfloat16) * 0.2)(B, H, Sk, Dh)),
            "wq": _w((lambda *s: torch.randn(*s, dtype=torch.bfloat16) * 1.6)(D, H * Dh) * (D ** -0.5)),
            "wo": _w((lambda *s: torch.randn(*s, dtype=torch.bfloat16) * 0.2)(H * Dh, D) * ((H * Dh) ** -0.5)),
        }
    _A_in = _A_setup()

    def _B_setup():
        B, S, D, F = 2, 1, 576, 4608
        return {
            "x": _w((lambda *s: torch.randn(*s, dtype=torch.bfloat16) * 0.05)(B, S, D)),
            "w_gate": _w((lambda *s: torch.randn(*s, dtype=torch.bfloat16) * 0.1)(D, F)),
            "w_up": _w((lambda *s: torch.randn(*s, dtype=torch.bfloat16) * 0.1)(D, F)),
            "w_down": _w((lambda *s: torch.randn(*s, dtype=torch.bfloat16) * 0.1)(F, D)),
        }
    _B_in = _B_setup()

    return {
        "A_x": _A_in["x"],
        "A_k_cache": _A_in["k_cache"],
        "A_v_cache": _A_in["v_cache"],
        "A_wq": _A_in["wq"],
        "A_wo": _A_in["wo"],
        "B_x": _B_in["x"],
        "B_w_gate": _B_in["w_gate"],
        "B_w_up": _B_in["w_up"],
        "B_w_down": _B_in["w_down"],
    }

def reference(A_x, A_k_cache, A_v_cache, A_wq, A_wo, B_x, B_w_gate, B_w_up, B_w_down):
    def _A_ref(x, k_cache, v_cache, wq, wo):
        B, Sq, D = x.shape
        H, Dh = 32, 128
        q = (lambda x, *d: x.permute(*d))((x @ wq).reshape(B, Sq, H, Dh), 0, 2, 1, 3)
        scores = torch.einsum("bhqd,bhkd->bhqk", q, k_cache) * (Dh ** -0.5)
        p = _softmax(scores, axis=-1)
        o = torch.einsum("bhqk,bhkd->bhqd", p, v_cache)
        return (lambda x, *d: x.permute(*d))(o, 0, 2, 1, 3).reshape(B, Sq, H * Dh) @ wo

    def _B_ref(x, w_gate, w_up, w_down):
        g = _silu(x @ w_gate)
        u = x @ w_up
        return (g * u) @ w_down

    x = A_x
    xn = _layernorm(x, axis=-1)
    s = _A_ref(xn, A_k_cache, A_v_cache, A_wq, A_wo)
    g = _silu(_B_ref(xn, B_w_gate, B_w_up, B_w_down))
    return x + s * g
```

```python
import re, sys

TRANS = ("v_exp_f32", "v_log_f32", "v_rcp_f32", "v_rsq_f32", "v_sqrt_f32", "v_sin_f32", "v_cos_f32", "v_rcp_iflag_f32")

def regs(tok):
    tok = tok.strip()
    tok = re.sub(r"^-|^abs\(|\)$|^\|", "", tok)
    tok = tok.strip("|")
    m = re.fullmatch(r"([vsa])\[(\d+):(\d+)\]", tok)
    if m: return {(m.group(1), i) for i in range(int(m.group(2)), int(m.group(3)) + 1)}
    m = re.fullmatch(r"([vsa])(\d+)", tok)
    if m: return {(m.group(1), int(m.group(2)))}
    if tok == "vcc": return {("s", "vcc")}
    if tok in ("vcc_lo", "vcc_hi"): return {("s", "vcc")}
    if tok == "exec": return {("s", "exec")}
    if tok == "m0": return {("s", "m0")}
    return set()

class I:
    def __init__(self, text, ln):
        self.text = text; self.ln = ln
        t = text.split(None, 1)
        self.op = t[0]
        rest = t[1] if len(t) > 1 else ""
        ops = [x.strip() for x in re.split(r",(?![^\[]*\])", rest)] if rest else []
        clean = []
        for o in ops:
            clean.append(o.split()[0] if o else o)
        self.ops = clean
        op = self.op
        self.mfma = op.startswith("v_mfma")
        self.valu = op.startswith("v_") and not self.mfma
        self.dpp = self.valu and ("_dpp" in op or "quad_perm" in text or "row_" in text)
        self.trans = any(op.startswith(x) for x in TRANS)
        self.permlane = op.startswith("v_permlane")
        self.readlane = op.startswith("v_readfirstlane") or op.startswith("v_readlane")
        self.vmem = op.startswith("buffer_") or op.startswith("global_")
        self.ds = op.startswith("ds_")
        self.salu = op.startswith("s_")
        self.ws = 1
        if op == "s_nop": self.ws = int(clean[0], 0) + 1
        R = [regs(o) for o in clean]
        self.w = set(); self.r = set(); self.A = self.B = self.C = set()
        self.storedata = set()
        if self.mfma:
            self.w = R[0]; self.A = R[1]; self.B = R[2]; self.C = R[3]; self.r = R[1] | R[2] | R[3]
        elif self.valu:
            if self.permlane and "swap" in op:
                self.w = R[0] | R[1]; self.r = R[0] | R[1]
            elif op.startswith("v_cmp"):
                self.w = set(R[0]); self.r = set().union(*R[1:])
                if op.startswith("v_cmpx"): self.w |= {("s", "exec")}
            elif "_co_" in op and not op.startswith("v_cvt"):
                self.w = R[0] | R[1]; self.r = set().union(*R[2:])
            else:
                self.w = set(R[0]); self.r = set().union(*R[1:]) if len(R) > 1 else set()
                if op.startswith("v_fmac") or op.startswith("v_dot2c") or op.startswith("v_writelane") or self.dpp:
                    self.r |= R[0]
                if op.startswith("v_cndmask") and len(clean) == 3: self.r |= {("s", "vcc")}
        elif op.startswith("buffer_load"):
            if " lds" in text: self.r = set().union(*R) | {("s", "m0")}
            else: self.w = R[0]; self.r = set().union(*R[1:])
        elif op.startswith("buffer_store"):
            self.r = set().union(*R)
            if "x3" in op or "x4" in op: self.storedata = R[0]
        elif op.startswith("buffer_atomic"):
            self.r = set().union(*R)
            if "sc0" in text: self.w = R[0]
        elif op.startswith("global_load"):
            if "lds" in op: self.r = set().union(*R) | {("s", "m0")}
            else: self.w = R[0]; self.r = set().union(*R[1:])
        elif op.startswith("global_store"):
            self.r = set().union(*R)
            if "x3" in op or "x4" in op: self.storedata = R[1]
        elif op.startswith("ds_read") or op.startswith("ds_bpermute") or op.startswith("ds_swizzle"):
            self.w = R[0]; self.r = set().union(*R[1:])
        elif self.ds:
            self.r = set().union(*R)
        elif self.salu:
            if op.startswith("s_cmp") or op.startswith("s_cbranch") or op.startswith("s_bitcmp") or op in ("s_waitcnt", "s_nop", "s_barrier", "s_branch", "s_endpgm", "s_setprio", "s_sleep"):
                self.r = set().union(*R) if R else set()
            else:
                self.w = set(R[0]) if R else set(); self.r = set().union(*R[1:]) if len(R) > 1 else set()
                if "saveexec" in op: self.w |= {("s", "exec")}
        self.target = None
        if op.startswith("s_cbranch") or op == "s_branch": self.target = clean[0]

def vg(s): return {x for x in s if x[0] in "va"}
def sg(s): return {x for x in s if x[0] == "s"}

def need(p, c):
    n = 0; why = None
    def up(k, w):
        nonlocal n, why
        if k > n: n, why = k, w
    if p.valu:
        wv = vg(p.w); wsg = sg(p.w)
        if c.mfma and wv & c.r: up(2, "valu->mfma")
        if c.dpp and wv & c.r: up(2, "valu->dpp")
        if c.permlane and wv & c.r: up(2, "valu->permlane")
        if c.readlane and wv & c.r: up(1, "valu->readlane")
        if p.trans and c.valu and not c.trans and wv & c.r: up(1, "trans->valu")
        if p.trans and c.mfma and wv & c.r: up(2, "trans->mfma")
        if wsg:
            if c.vmem and wsg & c.r: up(5, "valu sgpr->vmem")
            if c.valu and (wsg - {("s", "exec")}) & c.r: up(2, "valu sgpr->valu")
            if c.readlane and wsg & c.r: up(4, "valu sgpr->lane select")
            if ("s", "exec") in wsg:
                if c.dpp: up(5, "valu exec->dpp")
                if c.mfma or c.permlane or c.readlane: up(4, "valu exec->mfma/permlane/readlane")
            if c.salu and (wsg - {("s", "vcc")}) & c.r: up(1, "valu sgpr->salu (pad)")
    if p.mfma:
        passes = 8 if "32x32" in p.op else 4
        big = {4: 8, 8: 12}[passes]
        if c.mfma:
            if p.w & (c.A | c.B): up(big, "mfma->mfma AB")
            if p.w & c.C and p.w != c.C: up({4: 6, 8: 10}[passes], "mfma->mfma C overlap")
        elif (c.valu or c.vmem or c.ds) and p.w & (c.r | c.w): up(big, "mfma D->valu/mem")
        if c.valu and p.C & vg(c.w): up({4: 3, 8: 7}[passes], "mfma C WAR")
    if p.storedata:
        if c.valu and p.storedata & c.w: up(2, "store data WAR valu")
        elif (c.vmem or c.ds or c.mfma) and p.storedata & c.w: up(1, "store data WAR")
    if p.salu and ("s", "m0") in p.w and ("s", "m0") in c.r and c.vmem: up(1, "m0->ldsdma")
    return n, why

def check(text, verbose=True):
    ins = []; labels = {}
    for ln, line in enumerate(text.splitlines(), 1):
        s = line.split(";")[0].split("//")[0].strip()
        if not s or s.startswith("."): continue
        m = re.fullmatch(r"([\w.$]+):", s)
        if m: labels[m.group(1)] = len(ins); continue
        if not re.match(r"^(s_|v_|ds_|buffer_|global_)", s): continue
        ins.append(I(s, ln))
    bad = []
    for i, p in enumerate(ins):
        if not (p.valu or p.mfma or p.storedata or (p.salu and ("s", "m0") in p.w)): continue
        stack = [(i, 0)]; seen = set()
        while stack:
            j, d = stack.pop()
            q = ins[j]
            nxt = []
            if q.op == "s_endpgm": continue
            if q.op != "s_branch" and j + 1 < len(ins): nxt.append(j + 1)
            if q.target is not None and q.target in labels and labels[q.target] < len(ins): nxt.append(labels[q.target])
            for k in nxt:
                c = ins[k]
                n, why = need(p, c)
                if n > d: bad.append((p, c, n, d, why))
                d2 = d + c.ws
                if d2 < 13 and (k, d2) not in seen:
                    seen.add((k, d2)); stack.append((k, d2))
    uniq = {}
    for p, c, n, d, why in bad:
        key = (p.ln, c.ln)
        if key not in uniq or d < uniq[key][3]: uniq[key] = (p, c, n, d, why)
    if verbose:
        for key in sorted(uniq):
            p, c, n, d, why = uniq[key]
            print(f"HAZARD {why}: need {n} have {d}\n   L{p.ln}: {p.text}\n   L{c.ln}: {c.text}")
    return len(uniq)

if __name__ == "__main__":
    n = check(open(sys.argv[1]).read())
    print("hazards:", n)
```

```python
import sys, argparse

KNAME = "recurrent_scan__mha_block_cached__swiglu_ffn__decode_kernel"

DEF = dict(
    RT=2,
    W=5,
    KVF="nt",
    WF="nt",
    WOW=2,
    WOWF=4,
    STAMP=0,
    PRIO=0,
)

XD = 0
QP = 4608
QB = 6656
OL = 6912
ML = 8960
GX = 8992
HD = 9216
YL = 9728
LDS_BYTES = YL + 4 * 4608

WS_Y = 0
WS_LSE = 72 * 8192
WS_FP = WS_LSE + 4096
WS_SIZE = WS_FP + 72 * 4608
WS_STAMP = 4 << 20
DBG_C = 0
DBG_F = 128
OOB = 0x40000000

LOG2E = 0x3fb8aa3b
SCALE = 0x3db504f3
SPIN_MAX = 1 << 22


class Gen:
    def __init__(self, **kw):
        self.p = dict(DEF); self.p.update(kw)
        self.L = []
        self.uid = 0

    def __call__(self, s):
        for line in s.strip("\n").split("\n"):
            line = line.strip()
            if not line: continue
            self.L.append(line if line.endswith(":") else "    " + line)

    def lab(self, base):
        self.uid += 1
        return f"L_{base}_{self.uid}"

    def stamp(self, k):
        if self.p["STAMP"]:
            self(f"s_memrealtime s[{84+2*k}:{85+2*k}]")
            if k: self("s_waitcnt lgkmcnt(0)")

    def stamp_out(self):
        if not self.p["STAMP"]: return
        a = self
        a("s_mov_b64 exec, -1")
        a("s_waitcnt lgkmcnt(0)")
        a("s_lshl_b32 s61, s2, 3")
        a("s_add_u32 s61, s61, s3")
        a("s_lshl_b32 s61, s61, 5")
        a(f"s_add_u32 s61, s61, {WS_STAMP}")
        for k in range(8):
            a(f"v_mov_b32 v{4+k}, s{84+2*k}")
        a("v_mov_b32 v12, s61")
        a("s_mov_b32 s46, 0x800000")
        a("s_mov_b64 exec, 1")
        a("buffer_store_dwordx4 v[4:7], v12, s[44:47], 0 offen")
        a("buffer_store_dwordx4 v[8:11], v12, s[44:47], 0 offen offset:16")
        a("s_waitcnt vmcnt(0)")

    def srd(self, d, lo, size):
        self(f"s_mov_b32 s{d}, s{lo}\ns_mov_b32 s{d+1}, s{lo+1}\ns_mov_b32 s{d+2}, {size}\ns_mov_b32 s{d+3}, 0x20000")

    def masks(self, m, t0, t1):
        a = self
        a(f"v_and_b32 v{t0}, 1, v0")
        a(f"v_lshlrev_b32 v{t0}, 4, v{t0}")
        a(f"v_mov_b32 v{t1}, 0xffff")
        a(f"v_lshlrev_b32 v{t0}, v{t0}, v{t1}")
        a(f"v_bfe_u32 v{t1}, v0, 1, 2")
        for r in range(4):
            a(f"v_cmp_eq_u32 vcc, {r}, v{t1}")
            a("s_nop 1")
            a(f"v_cndmask_b32 v{m+r}, 0, v{t0}, vcc")

    def xrow(self, op, regs, tmps):
        a = self
        for sw in ("v_permlane16_swap_b32", "v_permlane32_swap_b32"):
            for r, t in zip(regs, tmps): a(f"v_mov_b32 v{t}, v{r}")
            a("s_nop 1" if len(regs) < 2 else "s_nop 0" if len(regs) < 3 else "s_nop 0")
            if len(regs) >= 2: a("s_nop 0")
            for r, t in zip(regs, tmps): a(f"{sw} v{r}, v{t}")
            for r, t in zip(regs, tmps): a(f"{op} v{r}, v{r}, v{t}")

    def quad_reduce4(self, acc, tmp):
        a = self
        for rot in (4, 8):
            a("s_nop 1")
            for i in range(4):
                a(f"v_add_f32_dpp v{acc+i}, v{acc+i}, v{acc+i} row_ror:{rot} row_mask:0xf bank_mask:0xf")
        self.xrow("v_add_f32", [acc + i for i in range(4)], [tmp + i for i in range(4)])

    def bf16r(self, dst_lo, dst_hi, a0, a1, pk):
        a = self
        a(f"v_cvt_pk_bf16_f32 v{pk}, v{a0}, v{a1}")
        a(f"v_lshlrev_b32 v{dst_lo}, 16, v{pk}")
        a(f"v_and_b32 v{dst_hi}, 0xffff0000, v{pk}")

    def silu(self, dst, x, t):
        a = self
        for d, xx, tt in zip(dst, x, t): a(f"v_mul_f32 v{tt}, 0xbfb8aa3b, v{xx}")
        for tt in t: a(f"v_exp_f32 v{tt}, v{tt}")
        a("s_nop 0")
        for tt in t: a(f"v_add_f32 v{tt}, 1.0, v{tt}")
        for tt in t: a(f"v_rcp_f32 v{tt}, v{tt}")
        a("s_nop 0")
        for d, xx, tt in zip(dst, x, t): a(f"v_mul_f32 v{d}, v{xx}, v{tt}")

    def poll_counter(self, off, target, vt, vz):
        a = self
        lp = a.lab("poll"); dn = a.lab("polld")
        a(f"v_mov_b32 v{vz}, 0")
        a(f"s_mov_b32 s70, {SPIN_MAX}")
        a(f"{lp}:")
        a(f"buffer_load_dword v{vt}, v{vz}, s[48:51], 0 offen offset:{off} sc1")
        a("s_waitcnt vmcnt(0)")
        a(f"v_readfirstlane_b32 s71, v{vt}")
        a("s_nop 0")
        a(f"s_cmp_ge_u32 s71, {target}")
        a(f"s_cbranch_scc1 {dn}")
        a("s_sleep 8")
        a("s_sub_u32 s70, s70, 1")
        a("s_cmp_lg_u32 s70, 0")
        a(f"s_cbranch_scc1 {lp}")
        a(f"{dn}:")

    def signal(self, off, vt, vz):
        a = self
        a("s_waitcnt vmcnt(0)")
        a(f"v_mov_b32 v{vt}, 1")
        a(f"v_mov_b32 v{vz}, 0")
        a("s_mov_b64 exec, 1")
        a(f"buffer_atomic_add v{vt}, v{vz}, s[48:51], 0 offen offset:{off} sc1")
        a("s_mov_b64 exec, -1")

    def build(self):
        a = self; p = self.p
        a(f"{KNAME}:")
        a("s_cmp_ge_u32 s2, 256")
        a("s_cbranch_scc1 L_end")
        a.stamp(0)
        a("s_load_dwordx16 s[4:19], s[0:1], 0")
        a("s_load_dwordx8 s[20:27], s[0:1], 64")
        a("v_lshrrev_b32 v1, 6, v0")
        a("v_and_b32 v0, 63, v0")
        a("v_readfirstlane_b32 s3, v1")
        a("s_and_b32 s60, s2, 7")
        a("s_lshr_b32 s59, s2, 3")
        a("s_lshr_b32 s56, s59, 3")
        a("s_lshl2_add_u32 s56, s60, s56")
        a("s_bfe_u32 s57, s59, 0x10002")
        a("s_and_b32 s58, s59, 3")
        a("s_cmp_ge_u32 s3, 4")
        a("s_cbranch_scc1 L_aux")
        self.attn()
        a("L_aux:")
        self.aux()
        a("L_end:")
        a("s_endpgm")
        return self.text()

    def attn(self):
        a = self; p = self.p
        RT, W = p["RT"], p["W"]
        NP = 1 + 32 // RT
        fl = p["KVF"]
        Q, M, ACC, VM, VL, D0, D1 = 4, 12, 16, 20, 21, 24, 28
        A_, T_, P_, AL, MX, TM, MN = 32, 36, 40, 44, 45, 46, 47
        AB = (48, 52)
        RING = 64
        a("v_bfe_u32 v1, v0, 1, 3")
        a("v_lshlrev_b32 v1, 8, v1")
        a("v_and_b32 v3, 1, v0")
        a("v_lshl_add_u32 v1, v3, 6, v1")
        a("v_lshrrev_b32 v3, 4, v0")
        a("v_lshl_add_u32 v1, v3, 4, v1")
        a("v_and_b32 v2, 15, v0")
        a("v_lshlrev_b32 v2, 4, v2")
        a("v_lshl_add_u32 v2, v3, 9, v2")
        a("s_lshl_b32 s61, s57, 26")
        a("s_lshl_b32 s62, s56, 21")
        a("s_add_u32 s61, s61, s62")
        a("s_lshl_b32 s62, s58, 19")
        a("s_add_u32 s61, s61, s62")
        a("s_lshl_b32 s62, s3, 12")
        a("s_add_u32 s61, s61, s62")
        a("s_sub_u32 s61, s61, 16384")
        a("s_mov_b32 s62, 0")
        a(f"s_mov_b32 s63, {LOG2E:#x}")
        a("s_waitcnt lgkmcnt(0)")
        a.srd(28, 6, 0x8000000)
        a.srd(32, 8, 0x8000000)
        a.stamp(1)
        a("L_loop:")
        for j in range(RT):
            kb = RING + 32 * j; vb = kb + 16
            def load(n):
                sk = a.lab("sk")
                a(f"s_cbranch_scc1 {sk}")
                a(f"s_waitcnt vmcnt({W-1})")
                if n < 4:
                    a(f"buffer_load_dwordx4 v[{kb+4*n}:{kb+4*n+3}], v1, s[28:31], s61 offen offset:{(n>>1)*2048+(n&1)*128} {fl}")
                else:
                    m = n - 4
                    a(f"buffer_load_dwordx4 v[{vb+4*m}:{vb+4*m+3}], v2, s[32:35], s61 offen offset:{(m>>1)*2048+(m&1)*256} {fl}")
                a(f"{sk}:")
            def twait(n):
                sk = a.lab("tw")
                a(f"s_cbranch_scc0 {sk}")
                a(f"s_waitcnt vmcnt({n})")
                a(f"{sk}:")
            a("s_add_u32 s61, s61, 16384")
            a(f"s_cmp_eq_u32 s62, {NP-1}")
            twait(4 + 8 * (RT - 1 - j))
            a(f"v_mfma_f32_16x16x32_bf16 v[{D0}:{D0+3}], v[{kb}:{kb+3}], v[{Q}:{Q+3}], 0")
            a(f"v_mfma_f32_16x16x32_bf16 v[{D1}:{D1+3}], v[{kb+8}:{kb+11}], v[{Q}:{Q+3}], 0")
            a(f"v_mfma_f32_16x16x32_bf16 v[{D0}:{D0+3}], v[{kb+4}:{kb+7}], v[{Q+4}:{Q+7}], v[{D0}:{D0+3}]")
            a(f"v_mfma_f32_16x16x32_bf16 v[{D1}:{D1+3}], v[{kb+12}:{kb+15}], v[{Q+4}:{Q+7}], v[{D1}:{D1+3}]")
            load(0)
            a("s_nop 5")
            dp = "row_mask:0xf bank_mask:0xf"
            a(f"v_mov_b32_dpp v{T_}, v{D0+1} quad_perm:[1,1,3,3] {dp}")
            a(f"v_mov_b32_dpp v{T_+1}, v{D0+3} quad_perm:[1,1,3,3] {dp}")
            a(f"v_mov_b32_dpp v{T_+2}, v{D1+1} quad_perm:[1,1,3,3] {dp}")
            a(f"v_mov_b32_dpp v{T_+3}, v{D1+3} quad_perm:[1,1,3,3] {dp}")
            a(f"v_add_f32_dpp v{A_}, v{D0}, v{T_} quad_perm:[0,0,2,2] {dp}")
            a(f"v_add_f32_dpp v{A_+1}, v{D0+2}, v{T_+1} quad_perm:[0,0,2,2] {dp}")
            a(f"v_add_f32_dpp v{A_+2}, v{D1}, v{T_+2} quad_perm:[0,0,2,2] {dp}")
            a(f"v_add_f32_dpp v{A_+3}, v{D1+2}, v{T_+3} quad_perm:[0,0,2,2] {dp}")
            a.bf16r(A_, A_ + 1, A_, A_ + 1, T_)
            a.bf16r(A_ + 2, A_ + 3, A_ + 2, A_ + 3, T_ + 1)
            load(1)
            for k in range(4): a(f"v_mul_f32 v{A_+k}, {SCALE:#x}, v{A_+k}")
            a.bf16r(A_, A_ + 1, A_, A_ + 1, T_)
            a.bf16r(A_ + 2, A_ + 3, A_ + 2, A_ + 3, T_ + 1)
            a(f"v_max3_f32 v{MX}, v{A_}, v{A_+1}, v{A_+2}")
            a(f"v_max_f32 v{MX}, v{MX}, v{A_+3}")
            a.xrow("v_max_f32", [MX], [TM])
            load(2)
            a(f"v_mul_f32 v{MX}, s63, v{MX}")
            a(f"v_max_f32 v{MN}, v{VM}, v{MX}")
            a(f"v_sub_f32 v{AL}, v{VM}, v{MN}")
            for k in range(4): a(f"v_fma_f32 v{P_+k}, v{A_+k}, s63, -v{MN}")
            a(f"v_exp_f32 v{AL}, v{AL}")
            for k in range(4): a(f"v_exp_f32 v{P_+k}, v{P_+k}")
            a(f"v_mov_b32 v{VM}, v{MN}")
            for k in range(4): a(f"v_mul_f32 v{ACC+k}, v{ACC+k}, v{AL}")
            for k in range(4): a(f"v_cvt_pk_bf16_f32 v{T_+k}, v{P_+k}, v{P_+k}")
            load(3)
            a(f"v_add_f32 v{P_}, v{P_}, v{P_+1}")
            a(f"v_add_f32 v{P_+2}, v{P_+2}, v{P_+3}")
            a(f"v_fma_f32 v{VL}, v{VL}, v{AL}, v{P_}")
            a(f"v_add_f32 v{VL}, v{VL}, v{P_+2}")
            for k in range(4):
                ab = AB[k & 1]
                for r in range(4): a(f"v_and_b32 v{ab+r}, v{T_+k}, v{M+r}")
                twait(8 * (RT - 1 - j) + 3 - k)
                a("s_nop 0")
                a(f"v_mfma_f32_16x16x32_bf16 v[{ACC}:{ACC+3}], v[{ab}:{ab+3}], v[{vb+4*k}:{vb+4*k+3}], v[{ACC}:{ACC+3}]")
                load(4 + k)
        a("s_add_u32 s62, s62, 1")
        a("s_cmp_eq_u32 s62, 1")
        a("s_cbranch_scc1 L_qwait")
        a(f"s_cmp_lt_u32 s62, {NP}")
        a("s_cbranch_scc1 L_loop")
        a.stamp(3)
        a.xrow("v_add_f32", [VL], [TM])
        a("s_nop 1")
        a(f"ds_write_b128 v56, v[{ACC}:{ACC+3}]")
        a(f"ds_write2_b32 v57, v{VM}, v{VL} offset0:0 offset1:4")
        a("s_waitcnt lgkmcnt(0)")
        a("s_barrier")
        a.stamp(4)
        a("s_cmp_lg_u32 s3, 0")
        a("s_cbranch_scc1 L_attn_exit")
        a("s_sub_u32 s64, s59, 9")
        a("s_cmp_ge_u32 s64, 9")
        a("s_cbranch_scc1 L_attn_exit")
        self.reducer()
        a("L_attn_exit:")
        if p["STAMP"]:
            a.srd(44, 26, WS_SIZE)
            a.stamp_out()
        a("s_endpgm")
        a("L_qwait:")
        a.masks(M, 58, 59)
        a("v_and_b32 v58, 15, v0")
        a("v_lshlrev_b32 v56, 5, v58")
        a("v_bfe_u32 v59, v0, 4, 1")
        a("v_lshl_add_u32 v56, v59, 4, v56")
        a("s_lshl_b32 s64, s3, 9")
        a(f"s_add_u32 s64, s64, {OL}")
        a("v_add_u32 v56, s64, v56")
        a("s_lshl_b32 s64, s3, 2")
        a(f"s_add_u32 s64, s64, {ML}")
        a("v_mov_b32 v57, s64")
        a("v_lshlrev_b32 v58, 3, v0")
        a("v_lshlrev_b32 v59, 2, v0")
        a("v_and_b32 v60, 1, v0")
        a("v_lshlrev_b32 v60, 6, v60")
        a("v_lshrrev_b32 v61, 4, v0")
        a("v_lshl_add_u32 v60, v61, 4, v60")
        a("s_barrier")
        a.stamp(2)
        for w in range(4):
            a(f"ds_read_b64 v[{Q+2*w}:{Q+2*w+1}], v58 offset:{QP+512*w}")
        a(f"v_mov_b32 v{VM}, 0xff800000")
        a(f"v_mov_b32 v{VL}, 0")
        for k in range(4): a(f"v_mov_b32 v{ACC+k}, 0")
        a("s_waitcnt lgkmcnt(0)")
        a(f"v_pk_add_f32 v[{Q}:{Q+1}], v[{Q}:{Q+1}], v[{Q+2}:{Q+3}]")
        a(f"v_pk_add_f32 v[{Q+4}:{Q+5}], v[{Q+4}:{Q+5}], v[{Q+6}:{Q+7}]")
        a(f"v_pk_add_f32 v[{Q}:{Q+1}], v[{Q}:{Q+1}], v[{Q+4}:{Q+5}]")
        a(f"v_cvt_pk_bf16_f32 v{Q}, v{Q}, v{Q+1}")
        a(f"ds_write_b32 v59, v{Q} offset:{QB}")
        a("s_waitcnt lgkmcnt(0)")
        a(f"ds_read_b128 v[{Q}:{Q+3}], v60 offset:{QB}")
        a(f"ds_read_b128 v[{Q+4}:{Q+7}], v60 offset:{QB+128}")
        a("s_waitcnt lgkmcnt(0)")
        a("s_branch L_loop")

    def reducer(self):
        a = self
        Y, LS, ACC, TM, GV, XV = 64, 96, 104, 108, 112, 116
        a.srd(44, 26, WS_SIZE)
        a.srd(52, 22, 2304)
        a("s_mul_i32 s65, s60, 9")
        a("s_add_u32 s65, s65, s64")
        a("s_lshl_b32 s66, s65, 13")
        a("s_cmp_ge_u32 s65, 36")
        a("s_cselect_b32 s67, 0x200, 0")
        a(f"s_add_u32 s67, s67, {WS_LSE}")
        a("v_lshlrev_b32 v1, 4, v0")
        a("v_lshrrev_b32 v2, 2, v0")
        a("v_lshlrev_b32 v2, 4, v2")
        a("v_and_b32 v3, 3, v0")
        a("v_lshlrev_b32 v4, 4, v3")
        a("v_lshlrev_b32 v3, 3, v3")
        a("s_lshl_b32 s68, s65, 5")
        a(f"s_add_u32 s69, s66, 4096")
        a(f"s_mov_b32 s70, {SPIN_MAX}")
        a("s_barrier")
        a.stamp(5)
        a(f"ds_read_b128 v[{GV}:{GV+3}], v4 offset:{GX}")
        a(f"ds_read_b128 v[{XV}:{XV+3}], v4 offset:{GX+64}")
        a("L_rpoll:")
        a(f"buffer_load_dwordx4 v[{LS}:{LS+3}], v2, s[44:47], s67 offen sc1")
        a(f"buffer_load_dwordx4 v[{LS+4}:{LS+7}], v2, s[44:47], s67 offen offset:256 sc1")
        for t in range(8):
            a(f"buffer_load_dwordx4 v[{Y+4*t}:{Y+4*t+3}], v1, s[44:47], {'s66' if t < 4 else 's69'} offen offset:{(t&3)*1024} sc1")
        a("s_waitcnt vmcnt(8)")
        a(f"v_max3_u32 v5, v{LS}, v{LS+1}, v{LS+2}")
        a(f"v_max3_u32 v5, v5, v{LS+3}, v{LS+4}")
        a(f"v_max3_u32 v5, v5, v{LS+5}, v{LS+6}")
        a(f"v_max_u32 v5, v5, v{LS+7}")
        for t in range(8):
            a(f"s_waitcnt vmcnt({7-t})")
            a(f"v_max3_u32 v5, v5, v{Y+4*t}, v{Y+4*t+1}")
            a(f"v_max3_u32 v5, v5, v{Y+4*t+2}, v{Y+4*t+3}")
        a("v_cmp_eq_u32 vcc, -1, v5")
        a("s_and_b64 exec, exec, vcc")
        a("s_cbranch_execz L_rdone")
        a("s_sub_u32 s70, s70, 1")
        a("s_cmp_lg_u32 s70, 0")
        a("s_cbranch_scc1 L_rpoll")
        a("L_rdone:")
        a("s_mov_b64 exec, -1")
        a.stamp(6)
        for hs in range(2):
            l = LS + 4 * hs
            a(f"v_max3_f32 v5, v{l}, v{l+1}, v{l+2}")
            a(f"v_max_f32 v5, v5, v{l+3}")
            for s in range(4): a(f"v_sub_f32 v{l+s}, v{l+s}, v5")
            for s in range(4): a(f"v_exp_f32 v{l+s}, v{l+s}")
            a("s_nop 0")
            a(f"v_add_f32 v5, v{l}, v{l+1}")
            a(f"v_add_f32 v6, v{l+2}, v{l+3}")
            a("v_add_f32 v5, v5, v6")
            a("v_rcp_f32 v5, v5")
            a("s_nop 0")
            for s in range(4): a(f"v_mul_f32 v{l+s}, v{l+s}, v5")
        for t in range(8):
            for i in range(4):
                if t == 0: a(f"v_mul_f32 v{ACC+i}, v{Y+i}, v{LS}")
                else: a(f"v_fmac_f32 v{ACC+i}, v{Y+4*t+i}, v{LS+t}")
        a.quad_reduce4(ACC, TM)
        a("s_waitcnt lgkmcnt(0)")
        a.bf16r(ACC, ACC + 1, ACC, ACC + 1, TM)
        a.bf16r(ACC + 2, ACC + 3, ACC + 2, ACC + 3, TM + 1)
        for i in range(4): a(f"v_mul_f32 v{ACC+i}, v{ACC+i}, v{GV+i}")
        a.bf16r(ACC, ACC + 1, ACC, ACC + 1, TM)
        a.bf16r(ACC + 2, ACC + 3, ACC + 2, ACC + 3, TM + 1)
        for i in range(4): a(f"v_add_f32 v{ACC+i}, v{ACC+i}, v{XV+i}")
        a(f"v_cvt_pk_bf16_f32 v{TM}, v{ACC}, v{ACC+1}")
        a(f"v_cvt_pk_bf16_f32 v{TM+1}, v{ACC+2}, v{ACC+3}")
        a("s_mov_b64 exec, 15")
        a(f"buffer_store_dwordx2 v[{TM}:{TM+1}], v3, s[52:55], s68 offen")
        a.stamp(7)

    def aux(self):
        a = self; p = self.p
        wf = p["WF"]
        WST = 112
        M = 36
        XV, AB, DQ = 40, (76, 80), 84
        if p["PRIO"]: a(f"s_setprio {p['PRIO']}")
        a("s_sub_u32 s3, s3, 4")
        a("v_and_b32 v1, 15, v0")
        a("v_lshrrev_b32 v2, 4, v0")
        a("v_lshlrev_b32 v3, 4, v1")
        a("v_lshl_add_u32 v88, v2, 15, v3")
        for ii in range(1, 4): a(f"v_add_u32 v{88+ii}, {8192*ii}, v88")
        a("v_and_b32 v13, 31, v0")
        a("v_mul_u32_u24 v13, 36, v13")
        a("v_lshrrev_b32 v14, 5, v0")
        a("v_mul_u32_u24 v14, 1152, v14")
        a("v_add_u32 v13, v13, v14")
        a("s_and_b32 s61, s59, 7")
        a("s_lshl_b32 s62, s56, 8")
        for k in range(9):
            a(f"s_lshl2_add_u32 s{72+k}, s61, s3")
            if k < 8:
                a("s_add_u32 s61, s61, 1")
                a("s_cmp_eq_u32 s61, 9")
                a("s_cselect_b32 s61, 0, s61")
        a("s_waitcnt lgkmcnt(0)")
        a.srd(28, 4, 2304)
        a.srd(32, 10, 576 * 8192)
        a("buffer_load_dwordx4 v[4:7], v13, s[28:31], 0 offen")
        a("buffer_load_dwordx4 v[8:11], v13, s[28:31], 0 offen offset:16")
        a("buffer_load_dword v12, v13, s[28:31], 0 offen offset:32")
        for k in range(9):
            a(f"s_lshl_b32 s61, s{72+k}, 17")
            a("s_add_u32 s61, s61, s62")
            for ii in range(4):
                r = WST + 16 * k + 4 * ii
                a(f"buffer_load_dwordx4 v[{r}:{r+3}], v{88+ii}, s[32:35], s61 offen {wf}")
        a.stamp(1)
        a.srd(36, 12, 4096 * 1152)
        a.srd(40, 20, 4608 * 1152)
        a.srd(44, 26, WS_SIZE)
        a.srd(48, 24, 256)
        a.masks(M, 14, 15)
        a("s_waitcnt vmcnt(36)")
        X = 16
        for i in range(9):
            a(f"v_lshlrev_b32 v{X+2*i}, 16, v{4+i}")
            a(f"v_and_b32 v{X+2*i+1}, 0xffff0000, v{4+i}")
        def red32(r, t):
            for rot in (8, 4, 2, 1):
                a("s_nop 1")
                a(f"v_add_f32_dpp v{r}, v{r}, v{r} row_ror:{rot} row_mask:0xf bank_mask:0xf")
            a(f"v_mov_b32 v{t}, v{r}")
            a("s_nop 1")
            a(f"v_permlane16_swap_b32 v{r}, v{t}")
            a(f"v_add_f32 v{r}, v{r}, v{t}")
        a(f"v_add_f32 v4, v{X}, v{X+1}")
        for i in range(2, 18): a(f"v_add_f32 v4, v4, v{X+i}")
        red32(4, 5)
        a("v_mul_f32 v4, 0x3ae38e39, v4")
        a(f"v_sub_f32 v6, v{X}, v4")
        a("v_mul_f32 v7, v6, v6")
        for i in range(1, 18):
            a(f"v_sub_f32 v6, v{X+i}, v4")
            a("v_fmac_f32 v7, v6, v6")
        red32(7, 5)
        a("v_mul_f32 v7, 0x3ae38e39, v7")
        a.bf16r(4, 7, 4, 7, 5)
        a("v_add_f32 v7, 0x3727c5ac, v7")
        a.bf16r(7, 6, 7, 7, 5)
        a("v_sqrt_f32 v7, v7")
        a("s_nop 0")
        a.bf16r(7, 6, 7, 7, 5)
        a("v_rcp_f32 v8, v7")
        for i in range(18): a(f"v_sub_f32 v{X+i}, v{X+i}, v4")
        a("v_fma_f32 v9, -v7, v8, 1.0")
        a("v_fmac_f32 v8, v9, v8")
        for i in range(9): a.bf16r(X + 2 * i, X + 2 * i + 1, X + 2 * i, X + 2 * i + 1, 5)
        for i in range(18): a(f"v_mul_f32 v{X+i}, v{X+i}, v8")
        for i in range(18): a(f"v_cvt_pk_bf16_f32 v{X+i}, v{X+i}, v{X+i}")
        a("v_lshlrev_b32 v13, 1, v13")
        for i in range(9): a(f"ds_write_b64 v13, v[{X+2*i}:{X+2*i+1}] offset:{XD+8*i}")
        a("s_mul_i32 s61, s57, 2304")
        a("v_lshl_add_u32 v14, v2, 4, s61")
        a("s_waitcnt lgkmcnt(0)")
        for k in range(9):
            a(f"s_lshl_b32 s61, s{72+k}, 6")
            a(f"v_add_u32 v15, s61, v14")
            a(f"ds_read_b128 v[{XV+4*k}:{XV+4*k+3}], v15 offset:{XD}")
        a("v_lshlrev_b32 v15, 5, v1")
        a("v_and_b32 v13, 1, v2")
        a("v_lshl_add_u32 v92, v13, 4, v15")
        a("s_lshl_b32 s61, s3, 9")
        a("v_add_u32 v15, s61, v92")
        a("s_waitcnt lgkmcnt(0)")
        for n in range(36):
            ab = AB[n & 1]
            for r in range(4): a(f"v_and_b32 v{ab+r}, v{XV+n}, v{M+r}")
            a(f"s_waitcnt vmcnt({35-n})")
            a("s_nop 0")
            c = "0" if n == 0 else f"v[{DQ}:{DQ+3}]"
            a(f"v_mfma_f32_16x16x32_bf16 v[{DQ}:{DQ+3}], v[{ab}:{ab+3}], v[{WST+4*n}:{WST+4*n+3}], {c}")
        a("s_nop 7")
        a(f"ds_write_b128 v15, v[{DQ}:{DQ+3}] offset:{QP}")
        a("s_waitcnt lgkmcnt(0)")
        a("s_barrier")
        a.stamp(2)
        if p["PRIO"]: a("s_setprio 0")
        a("s_sub_u32 s64, s59, 9")
        a("s_mul_i32 s65, s60, 9")
        a("s_cmp_lg_u32 s3, 2")
        a("s_cbranch_scc1 L_noclear")
        a("s_cmp_ge_u32 s64, 9")
        a("s_cbranch_scc1 L_noclear")
        a("s_add_u32 s66, s65, s64")
        a("s_lshl_b32 s67, s66, 13")
        a("s_add_u32 s68, s67, 4096")
        for i in range(4): a(f"v_mov_b32 v{4+i}, -1")
        a("v_lshlrev_b32 v8, 4, v0")
        for t in range(8):
            a(f"buffer_store_dwordx4 v[4:7], v8, s[44:47], {'s67' if t < 4 else 's68'} offen offset:{(t&3)*1024} sc1")
        a("s_cmp_lg_u32 s66, 0")
        a("s_cbranch_scc1 L_nolse")
        a(f"s_mov_b32 s67, {WS_LSE}")
        a("buffer_store_dwordx4 v[4:7], v8, s[44:47], s67 offen sc1")
        a("L_nolse:")
        a.signal(DBG_C, 9, 10)
        a("L_noclear:")
        a("v_mul_u32_u24 v93, 2304, v2")
        a("v_add_u32 v93, v93, v3")
        a("s_lshl_b32 s61, s56, 2")
        a("s_add_u32 s61, s61, s3")
        a("s_mul_i32 s61, s61, 36864")
        a("s_cmp_lg_u32 s3, 0")
        a("s_cbranch_scc1 L_wo_slow")
        a("s_cmp_ge_u32 s59, 9")
        a("s_cbranch_scc1 L_wo_slow")
        def wo_loads(w):
            for i in range(4):
                for be in range(9):
                    r = WST + 36 * i + 4 * be
                    a(f"s_waitcnt vmcnt({w-1})")
                    a(f"buffer_load_dwordx4 v[{r}:{r+3}], v93, s[36:39], s61 offen offset:{be*256} {wf}")
                if i < 3: a("s_add_u32 s61, s61, 9216")
        wo_loads(p["WOWF"])
        self.ffn(M)
        a("s_branch L_wo_done")
        a("L_wo_slow:")
        wo_loads(p["WOW"])
        a("L_wo_done:")
        a.stamp(3)
        a("s_cmp_lg_u32 s3, 1")
        a("s_cbranch_scc1 L_nog")
        a("s_cmp_ge_u32 s64, 9")
        a("s_cbranch_scc1 L_nog")
        self.gate()
        a("L_nog:")
        a("s_cmp_lg_u32 s3, 3")
        a("s_cbranch_scc1 L_nochk")
        a.poll_counter(DBG_C, 72, 4, 5)
        a("L_nochk:")
        self.wo_tail(M, WST)

    def ffn(self, M):
        a = self; p = self.p
        wf = p["WF"]
        RING, XB, AB, DG, DN = 40, (88, 108), (96, 100), 104, 4
        a("s_add_u32 s66, s65, s59")
        a("s_lshl_b32 s67, s66, 7")
        a("v_cmp_gt_u32 vcc, 8, v1")
        a("v_mov_b32 v24, s18")
        a("v_mov_b32 v25, s16")
        a("v_cndmask_b32 v24, v24, v25, vcc")
        a("v_mov_b32 v25, s19")
        a("v_mov_b32 v26, s17")
        a("v_cndmask_b32 v25, v25, v26, vcc")
        a("v_and_b32 v26, 7, v1")
        a("v_lshlrev_b32 v26, 4, v26")
        a("v_mul_u32_u24 v27, 36864, v2")
        a("v_add3_u32 v26, v26, v27, s67")
        a("v_mov_b32 v27, 0")
        a("v_lshl_add_u64 v[24:25], v[24:25], 0, v[26:27]")
        a("s_mov_b32 s72, 9216\ns_mov_b32 s73, 0")
        a(f"s_mov_b32 s74, {13*9216}\ns_mov_b32 s75, 0")
        a("v_lshrrev_b32 v28, 3, v1")
        a("v_mul_u32_u24 v28, 2304, v28")
        a("v_lshl_add_u32 v28, v2, 4, v28")
        for i in range(4): a(f"v_mov_b32 v{DG+i}, 0")
        def ld(n):
            a(f"global_load_dwordx4 v[{RING+4*n}:{RING+4*n+3}], v[24:25], off {wf}")
            a(f"v_lshl_add_u64 v[24:25], v[24:25], 0, {'s[74:75]' if (n & 3) == 3 else 's[72:73]'}")
        a("s_waitcnt vmcnt(0)")
        for n in range(8): ld(n)
        a("s_mov_b32 s68, 0")
        a("L_ffn1:")
        a(f"ds_read_b128 v[{XB[0]}:{XB[0]+3}], v28 offset:{XD}")
        a(f"ds_read_b128 v[{XB[1]}:{XB[1]+3}], v28 offset:{XD+64}")
        a("v_add_u32 v28, 128, v28")
        a("s_cmp_eq_u32 s68, 17")
        a("s_cbranch_scc0 L_ffn1a")
        a("s_waitcnt vmcnt(0)")
        a("L_ffn1a:")
        a("s_waitcnt lgkmcnt(0)")
        for n in range(8):
            ab = AB[n & 1]
            for r in range(4): a(f"v_and_b32 v{ab+r}, v{XB[n>>2]+(n&3)}, v{M+r}")
            a("s_waitcnt vmcnt(7)")
            a("s_nop 0")
            a(f"v_mfma_f32_16x16x32_bf16 v[{DG}:{DG+3}], v[{ab}:{ab+3}], v[{RING+4*n}:{RING+4*n+3}], v[{DG}:{DG+3}]")
            sk = a.lab("fs")
            a(f"s_cbranch_scc1 {sk}")
            ld(n)
            a(f"{sk}:")
        a("s_add_u32 s68, s68, 1")
        a("s_cmp_lt_u32 s68, 18")
        a("s_cbranch_scc1 L_ffn1")
        a("v_mul_u32_u24 v24, 4608, v2")
        a("v_add_u32 v24, v24, v3")
        a(f"v_mov_b32 v25, {OOB:#x}")
        a("v_cmp_gt_u32 vcc, 8, v1")
        a("s_mul_i32 s69, s66, 73728")
        a("s_nop 0")
        a("v_cndmask_b32 v25, v25, v24, vcc")
        def ldd(slot):
            for be in range(5):
                r = RING + 20 * slot + 4 * be
                a(f"buffer_load_dwordx4 v[{r}:{r+3}], {'v25' if be == 4 else 'v24'}, s[40:43], s69 offen offset:{be*256} {wf}")
        ldd(0)
        a("s_add_u32 s69, s69, 1152")
        ldd(1)
        a("s_add_u32 s69, s69, 1152")
        G, T, U = 28, 32, 88
        a.bf16r(G, G + 1, DG, DG + 1, T)
        a.bf16r(G + 2, G + 3, DG + 2, DG + 3, T + 1)
        a("s_nop 1")
        for i in range(4): a(f"v_mov_b32_dpp v{U+i}, v{G+i} row_ror:8 row_mask:0xf bank_mask:0xf")
        a.silu([G + i for i in range(4)], [G + i for i in range(4)], [T + i for i in range(4)])
        a.bf16r(G, G + 1, G, G + 1, T)
        a.bf16r(G + 2, G + 3, G + 2, G + 3, T + 1)
        for i in range(4): a(f"v_mul_f32 v{G+i}, v{G+i}, v{U+i}")
        for i in range(4): a(f"v_cvt_pk_bf16_f32 v{G+i}, v{G+i}, v{G+i}")
        a("v_lshrrev_b32 v26, 1, v2")
        a("v_lshl_add_u32 v26, v26, 8, v92")
        a("s_mov_b32 exec_lo, 0x00ff00ff\ns_mov_b32 exec_hi, 0x00ff00ff")
        a(f"ds_write_b128 v26, v[{G}:{G+3}] offset:{HD}")
        a("s_mov_b64 exec, -1")
        a("v_lshrrev_b32 v26, 3, v1")
        a("v_lshlrev_b32 v26, 8, v26")
        a("v_lshl_add_u32 v26, v2, 4, v26")
        for i in range(20): a(f"v_mov_b32 v{DN+i}, 0")
        a("s_mov_b32 s68, 0")
        a("s_waitcnt lgkmcnt(0)")
        a("L_ffn2:")
        a(f"ds_read_b128 v[{XB[0]}:{XB[0]+3}], v26 offset:{HD}")
        a("v_add_u32 v26, 64, v26")
        a("s_waitcnt lgkmcnt(0)")
        for ii in range(4):
            ab = AB[ii & 1]; slot = ii & 1
            for r in range(4): a(f"v_and_b32 v{ab+r}, v{XB[0]+ii}, v{M+r}")
            if ii == 3:
                a("s_cmp_eq_u32 s68, 3")
                a("s_cbranch_scc0 L_ffn2a")
                a("s_waitcnt vmcnt(0)")
                a("L_ffn2a:")
            a("s_waitcnt vmcnt(5)")
            a("s_nop 0")
            for be in range(5):
                r = RING + 20 * slot + 4 * be
                a(f"v_mfma_f32_16x16x32_bf16 v[{DN+4*be}:{DN+4*be+3}], v[{ab}:{ab+3}], v[{r}:{r+3}], v[{DN+4*be}:{DN+4*be+3}]")
            sk = None
            if ii >= 2:
                sk = a.lab("ds")
                a("s_cmp_eq_u32 s68, 3")
                a(f"s_cbranch_scc1 {sk}")
            ldd(slot)
            a(f"s_add_u32 s69, s69, {13*1152 if ii == 1 else 1152}")
            if sk: a(f"{sk}:")
        a("s_add_u32 s68, s68, 1")
        a("s_cmp_lt_u32 s68, 4")
        a("s_cbranch_scc1 L_ffn2")
        a("v_lshrrev_b32 v24, 1, v2")
        a("v_mul_u32_u24 v24, 36, v24")
        a("v_lshrrev_b32 v25, 1, v1")
        a("v_add_u32 v24, v24, v25")
        a("v_mul_u32_u24 v24, 4608, v24")
        a("v_and_b32 v25, 63, v92")
        a("v_add_u32 v24, v24, v25")
        a(f"v_mov_b32 v25, {OOB:#x}")
        a("v_cmp_gt_u32 vcc, 8, v1")
        a("s_lshl_b32 s69, s66, 6")
        a(f"s_add_u32 s69, s69, {WS_FP}")
        a("v_cndmask_b32 v25, v25, v24, vcc")
        for be in range(5):
            a(f"buffer_store_dwordx4 v[{DN+4*be}:{DN+4*be+3}], {'v25' if be == 4 else 'v24'}, s[44:47], s69 offen sc1")
            if be < 4: a("s_add_u32 s69, s69, 36864")
        a.signal(DBG_F, 26, 27)

    def gate(self):
        a = self
        F, ACC, TM = 40, 4, 8
        a("s_add_u32 s66, s65, s64")
        a("s_lshl_b32 s67, s66, 5")
        a("v_and_b32 v12, 3, v0")
        a("v_lshlrev_b32 v13, 3, v12")
        a("buffer_load_dwordx2 v[14:15], v13, s[28:31], s67 offen")
        a.poll_counter(DBG_F, 72, 16, 17)
        a("s_mul_i32 s67, s66, 4608")
        a(f"s_add_u32 s67, s67, {WS_FP}")
        a("s_add_u32 s68, s67, 4096")
        a("v_lshlrev_b32 v16, 4, v0")
        a(f"v_mov_b32 v17, {OOB:#x}")
        a("v_cmp_gt_u32 vcc, 32, v0")
        a("s_nop 1")
        a("v_cndmask_b32 v17, v17, v16, vcc")
        for t in range(4):
            a(f"buffer_load_dwordx4 v[{F+4*t}:{F+4*t+3}], v16, s[44:47], s67 offen offset:{t*1024} sc1")
        a(f"buffer_load_dwordx4 v[{F+16}:{F+19}], v17, s[44:47], s68 offen sc1")
        a("s_waitcnt vmcnt(0)")
        for i in range(4): a(f"v_add_f32 v{ACC+i}, v{F+i}, v{F+4+i}")
        for t in range(2, 5):
            for i in range(4): a(f"v_add_f32 v{ACC+i}, v{ACC+i}, v{F+4*t+i}")
        a.quad_reduce4(ACC, TM)
        a.bf16r(ACC, ACC + 1, ACC, ACC + 1, TM)
        a.bf16r(ACC + 2, ACC + 3, ACC + 2, ACC + 3, TM + 1)
        a.silu([ACC + i for i in range(4)], [ACC + i for i in range(4)], [TM + i for i in range(4)])
        a.bf16r(ACC, ACC + 1, ACC, ACC + 1, TM)
        a.bf16r(ACC + 2, ACC + 3, ACC + 2, ACC + 3, TM + 1)
        a("v_lshlrev_b32 v8, 16, v14")
        a("v_and_b32 v9, 0xffff0000, v14")
        a("v_lshlrev_b32 v10, 16, v15")
        a("v_and_b32 v11, 0xffff0000, v15")
        a("v_lshlrev_b32 v12, 4, v12")
        a(f"ds_write_b128 v12, v[{ACC}:{ACC+3}] offset:{GX}")
        a(f"ds_write_b128 v12, v[8:11] offset:{GX+64}")

    def wo_tail(self, M, WST):
        a = self; p = self.p
        MM, LL, O, AB, DY = 4, 8, 16, (96, 100), 40
        a("v_lshrrev_b32 v94, 3, v1")
        a("v_lshl_add_u32 v94, v2, 1, v94")
        a("s_lshl_b32 s61, s3, 7")
        a(f"s_add_u32 s61, s61, {OL}")
        a("v_lshl_add_u32 v94, v94, 2, s61")
        a("v_add_u32 v95, 1024, v94")
        a(f"v_mov_b32 v104, {ML}")
        a("s_mul_i32 s61, s3, 4608")
        a(f"s_add_u32 s61, s61, {YL}")
        a("v_add_u32 v105, s61, v92")
        a("s_mul_i32 s61, s3, 576")
        a(f"s_add_u32 s61, s61, {YL}")
        a("v_lshl_add_u32 v106, v0, 4, s61")
        a("v_lshrrev_b32 v107, 2, v0")
        a("v_lshlrev_b32 v107, 13, v107")
        a("v_and_b32 v108, 3, v0")
        a("v_lshl_add_u32 v107, v108, 4, v107")
        a("s_mul_i32 s61, s57, 36")
        a("s_mul_i32 s62, s3, 9")
        a("s_add_u32 s61, s61, s62")
        a("s_lshl_b32 s61, s61, 7")
        a("s_lshr_b32 s62, s56, 4")
        a("s_lshl2_add_u32 s62, s62, s58")
        a("s_lshl_b32 s62, s62, 4")
        a("s_add_u32 s61, s61, s62")
        a("s_and_b32 s62, s56, 15")
        a("s_add_u32 s61, s61, s62")
        a("s_lshl_b32 s66, s61, 6")
        a("s_lshl_b32 s61, s57, 5")
        a("s_add_u32 s61, s61, s56")
        a("s_lshl2_add_u32 s61, s61, s58")
        a("s_lshl_b32 s61, s61, 2")
        a(f"s_add_u32 s67, s61, {WS_LSE}")
        a("v_mov_b32 v108, 0")
        a("s_waitcnt vmcnt(0) lgkmcnt(0)")
        a("s_barrier")
        a.stamp(4)
        a(f"ds_read_b128 v[{MM}:{MM+3}], v104")
        a(f"ds_read_b128 v[{LL}:{LL+3}], v104 offset:16")
        for i in range(4):
            a(f"ds_read2_b32 v[{O+4*i}:{O+4*i+1}], v94 offset0:{8*i} offset1:{8*i+128}")
            a(f"ds_read2_b32 v[{O+4*i+2}:{O+4*i+3}], v95 offset0:{8*i} offset1:{8*i+128}")
        a("s_waitcnt lgkmcnt(8)")
        a(f"v_max3_f32 v12, v{MM}, v{MM+1}, v{MM+2}")
        a(f"v_max_f32 v12, v12, v{MM+3}")
        for w in range(4): a(f"v_sub_f32 v{MM+w}, v{MM+w}, v12")
        for w in range(4): a(f"v_exp_f32 v{MM+w}, v{MM+w}")
        a("s_nop 0")
        a(f"v_mul_f32 v13, v{MM}, v{LL}")
        for w in range(1, 4): a(f"v_fmac_f32 v13, v{MM+w}, v{LL+w}")
        a("v_rcp_f32 v14, v13")
        a("v_log_f32 v13, v13")
        for w in range(4): a(f"v_mul_f32 v{MM+w}, v{MM+w}, v14")
        a("v_add_f32 v13, v13, v12")
        for i in range(4):
            ab = AB[i & 1]
            a(f"s_waitcnt lgkmcnt({6-2*i})")
            a(f"v_mul_f32 v15, v{O+4*i}, v{MM}")
            for w in range(1, 4): a(f"v_fmac_f32 v15, v{O+4*i+w}, v{MM+w}")
            a("v_cvt_pk_bf16_f32 v15, v15, v15")
            for r in range(4): a(f"v_and_b32 v{ab+r}, v15, v{M+r}")
            a("s_nop 1")
            for be in range(9):
                r = WST + 36 * i + 4 * be
                c = "0" if i == 0 else f"v[{DY+4*be}:{DY+4*be+3}]"
                a(f"v_mfma_f32_16x16x32_bf16 v[{DY+4*be}:{DY+4*be+3}], v[{ab}:{ab+3}], v[{r}:{r+3}], {c}")
        a("v_min_u32 v13, -2, v13")
        a("s_mov_b32 exec_lo, -1\ns_mov_b32 exec_hi, 0")
        for be in range(4): a(f"ds_write_b128 v105, v[{DY+4*be}:{DY+4*be+3}] offset:{be*512}")
        a("s_mov_b32 exec_lo, 0x00ff00ff\ns_mov_b32 exec_hi, 0xff00ff00")
        a(f"ds_write_b128 v105, v[{DY+16}:{DY+19}] offset:2048")
        a("s_mov_b32 exec_lo, 0\ns_mov_b32 exec_hi, -1")
        for be in range(5, 9): a(f"ds_write_b128 v105, v[{DY+4*be}:{DY+4*be+3}] offset:{be*512}")
        a("s_mov_b32 exec_lo, -1\ns_mov_b32 exec_hi, 15")
        a("s_waitcnt lgkmcnt(0)")
        a("s_barrier")
        a.stamp(5)
        for k in range(8): a(f"ds_read_b128 v[{DY+4*k}:{DY+4*k+3}], v106 offset:{2304*k}")
        for k in range(1, 8):
            a(f"s_waitcnt lgkmcnt({7-k})")
            a(f"v_pk_add_f32 v[{DY}:{DY+1}], v[{DY}:{DY+1}], v[{DY+4*k}:{DY+4*k+1}]")
            a(f"v_pk_add_f32 v[{DY+2}:{DY+3}], v[{DY+2}:{DY+3}], v[{DY+4*k+2}:{DY+4*k+3}]")
        for i in range(4): a(f"v_min_u32 v{DY+i}, -2, v{DY+i}")
        a(f"buffer_store_dwordx4 v[{DY}:{DY+3}], v107, s[44:47], s66 offen sc1")
        a("s_cmp_lg_u32 s3, 0")
        a("s_cbranch_scc1 L_aux_exit")
        a("s_mov_b64 exec, 1")
        a("buffer_store_dword v13, v108, s[44:47], s67 offen sc1")
        a("L_aux_exit:")
        a.stamp(6)
        if p["STAMP"]:
            a("s_add_u32 s3, s3, 4")
            a.stamp_out()

    def text(self):
        hdr = open("recurrent_scan__mha_block_cached__swiglu_ffn__decode.s.ref").read().split("\n")
        top = [l for l in hdr if l.startswith(";") and "@launch" not in l]
        out = top + [f"; @launch grid=(256,1,1) block=(512,1,1) lds={LDS_BYTES}"]
        out += ['.amdgcn_target "amdgcn-amd-amdhsa--gfx950"', ".text", f".globl {KNAME}", ".p2align 8", f".type {KNAME},@function"]
        out += self.L
        out += ['.section .rodata,"a"', ".p2align 6", f".amdhsa_kernel {KNAME}",
                "  .amdhsa_next_free_vgpr 256", "  .amdhsa_next_free_sgpr 102", "  .amdhsa_accum_offset 256",
                "  .amdhsa_group_segment_fixed_size 0", "  .amdhsa_kernarg_size 96", "  .amdhsa_user_sgpr_count 2",
                "  .amdhsa_user_sgpr_kernarg_segment_ptr 1", "  .amdhsa_system_sgpr_workgroup_id_x 1",
                "  .amdhsa_float_denorm_mode_32 3", ".end_amdhsa_kernel", ""]
        return "\n".join(out)


def make(**kw):
    return Gen(**kw).build()


if __name__ == "__main__":
    out = sys.argv[1]
    kw = {}
    for s in sys.argv[2:]:
        k, v = s.split("=", 1)
        kw[k] = int(v) if v.lstrip("-").isdigit() else v.replace("_", " ")
    txt = make(**kw)
    open(out, "w").write(txt)
    import hz
    n = hz.check(txt)
    print("hazards:", n, "lines:", txt.count("\n"))
```
